```python
import torch

def _softmax(x, axis=-1):
    return torch.softmax(x, dim=axis)
def _gelu(x):
    return torch.nn.functional.gelu(x, approximate="tanh")
def _silu(x):
    return torch.nn.functional.silu(x)
def _sigmoid(x):
    return torch.sigmoid(x)
def _layernorm(x, axis=-1, eps=1e-5):
    m = x.mean(dim=axis, keepdim=True)
    v = x.var(dim=axis, keepdim=True, unbiased=False)
    return (x - m) / torch.sqrt(v + eps)
def _scatter_add(tgt, idx, src, axis=0):
    return tgt.clone().index_add_(axis, idx, src)
def _segment_sum(src, seg, n):
    out = torch.zeros((n,) + src.shape[1:], dtype=src.dtype)
    return out.index_add_(0, seg, src)
def _pad(x, pw):
    flat = tuple(v for pair in reversed(pw) for v in pair)
    return torch.nn.functional.pad(x, flat)

kernel_name = 'interleave_layers__mha_block__ssm_conv_h3__prompt'

def setup_inputs():

    _w = (lambda a: (lambda t: t.to(torch.bfloat16) if t.is_floating_point() else t)(torch.as_tensor(a)))
    def _A_setup():
        B, S, D, H = 1, 2048, 512, 32
        return {
            "x": _w((lambda *s: torch.randn(*s, dtype=torch.bfloat16) * 0.05)(B, S, D)),
            "wqkv": _w((lambda *s: torch.randn(*s, dtype=torch.bfloat16) * 0.05)(D, 3 * D)),
            "wo": _w((lambda *s: torch.randn(*s, dtype=torch.bfloat16) * 0.05)(D, D)),
        }
    _A_in = _A_setup()

    def _B_setup():
        B, S, D = 1, 2048, 512
        ks = 4
        return {
            "q": _w((lambda *s: torch.randn(*s, dtype=torch.bfloat16) * 0.05)(B, S, D)),
            "k": _w((lambda *s: torch.randn(*s, dtype=torch.bfloat16) * 0.4)(B, S, D)),
            "v": _w((lambda *s: torch.randn(*s, dtype=torch.bfloat16) * 0.4)(B, S, D)),
            "shift_k": _w((lambda *s: torch.randn(*s, dtype=torch.bfloat16) * 0.4)(D, ks) * 0.5),
            "ssm_k": _w((lambda *s: torch.randn(*s, dtype=torch.bfloat16) * 0.4)(D, S) * (1.0 / S ** 0.5)),
            "ssm_D": _w((lambda *s: torch.randn(*s, dtype=torch.bfloat16) * 0.4)(D)),
        }
    _B_in = _B_setup()

    return {
        "A_x": _A_in["x"],
        "A_wqkv": _A_in["wqkv"],
        "A_wo": _A_in["wo"],
        "B_q": _B_in["q"],
        "B_k": _B_in["k"],
        "B_v": _B_in["v"],
        "B_shift_k": _B_in["shift_k"],
        "B_ssm_k": _B_in["ssm_k"],
        "B_ssm_D": _B_in["ssm_D"],
    }

def reference(A_x, A_wqkv, A_wo, B_q, B_k, B_v, B_shift_k, B_ssm_k, B_ssm_D):
    def _A_ref(x, wqkv, wo):
        B, S, D = x.shape
        H = 32
        Dh = D // H
        qkv = (lambda x, *d: x.permute(*d))((x @ wqkv).reshape(B, S, 3, H, Dh), 2, 0, 3, 1, 4)
        q, k, v = qkv[0], qkv[1], qkv[2]
        scores = torch.einsum("bhqd,bhkd->bhqk", q, k) * (Dh ** -0.5)
        p = _softmax(scores, axis=-1)
        o = torch.einsum("bhqk,bhkd->bhqd", p, v)
        return (lambda x, *d: x.permute(*d))(o, 0, 2, 1, 3).reshape(B, S, D) @ wo

    def _B_ref(q, k, v, shift_k, ssm_k, ssm_D):
        B, S, D = q.shape
        ks = shift_k.shape[-1]
        k_pad = _pad(k, ((0, 0), (ks - 1, 0), (0, 0)))
        k_shift = torch.zeros_like(k)
        for t in range(ks):
            k_shift = k_shift + k_pad[:, t:t + S, :] * shift_k[:, ks - 1 - t][None, None, :]
        kv = k_shift * v
        L = 2 * S
        kv_pad = _pad(kv, ((0, 0), (0, S), (0, 0)))
        kf_pad = _pad(ssm_k, ((0, 0), (0, S)))
        kv_f = (lambda x, axes=(-2,-1): torch.fft.rfft2(x.float(), dim=axes))(kv_pad[:, None, :, :], axes=(1, 2))
        kf_f = (lambda x, axes=(-2,-1): torch.fft.rfft2(x.float(), dim=axes))(kf_pad[:, None, :], axes=(1, 2))
        kf_f = (lambda x, *d: x.permute(*d))(kf_f, 1, 2, 0)
        y_f = kv_f * kf_f[None, :, :, :]
        y = (lambda x, s, axes=(-2,-1): torch.fft.irfft2(x, s=s, dim=axes).to(torch.bfloat16))(y_f, (1, L), axes=(1, 2))[:, 0, :S, :]
        y = y + kv * ssm_D[None, None, :]
        return q * y

    x = A_x
    x = x + _A_ref(_layernorm(x, axis=-1), A_wqkv, A_wo)
    x = x + _B_ref(_layernorm(x, axis=-1), B_k, B_v, B_shift_k, B_ssm_k, B_ssm_D)
    x = x + _A_ref(_layernorm(x, axis=-1), A_wqkv, A_wo)
    x = x + _B_ref(_layernorm(x, axis=-1), B_k, B_v, B_shift_k, B_ssm_k, B_ssm_D)
    return x
```

```python
import sys, os, subprocess, struct, ctypes
sys.path.insert(0, "cdna_kernels")
import numpy as np
import cdna_launch as cl

TEMPLATE = """; @launch grid=({grid},1,1) block=({block},1,1) lds={lds}
.amdgcn_target "amdgcn-amd-amdhsa--gfx950"
.text
.globl mb_kernel
.p2align 8
.type mb_kernel,@function
mb_kernel:
    s_load_dwordx2 s[4:5], s[0:1], 0
    s_waitcnt lgkmcnt(0)
    s_mov_b32 s8, s4
    s_mov_b32 s9, s5
    s_mov_b32 s10, 0x100000
    s_mov_b32 s11, 0x00020000
    v_lshrrev_b32 v1, 6, v0
    s_nop 1
    v_readfirstlane_b32 s20, v1
    v_and_b32 v200, 63, v0
    v_lshlrev_b32 v200, 4, v200
{init}
    s_mov_b32 s12, {iters}
    s_barrier
    s_memtime s[14:15]
    s_waitcnt lgkmcnt(0)
.p2align 6
L_loop:
{body}
    s_sub_u32 s12, s12, 1
    s_cmp_lg_u32 s12, 0
    s_cbranch_scc1 L_loop
    s_memtime s[16:17]
    s_waitcnt lgkmcnt(0)
    s_lshl_b32 s21, s2, 4
    s_add_u32 s21, s21, s20
    s_lshl_b32 s21, s21, 3
    v_mov_b32 v1, s21
    v_mov_b32 v2, s14
    v_mov_b32 v3, s16
    v_cmp_eq_u32 vcc, 0, v200
    s_and_saveexec_b64 s[22:23], vcc
    buffer_store_dwordx2 v[2:3], v1, s[8:11], 0 offen
    s_waitcnt vmcnt(0)
    s_endpgm
.section .rodata,"a"
.p2align 6
.amdhsa_kernel mb_kernel
  .amdhsa_next_free_vgpr {nvgpr}
  .amdhsa_next_free_sgpr 102
  .amdhsa_accum_offset {nvgpr}
  .amdhsa_group_segment_fixed_size 0
  .amdhsa_kernarg_size 8
  .amdhsa_user_sgpr_count 2
  .amdhsa_user_sgpr_kernarg_segment_ptr 1
  .amdhsa_system_sgpr_workgroup_id_x 1
.end_amdhsa_kernel
"""

def build(name, body, init="", waves_per_simd=1, iters=1000, lds=0, grid=256):
    nv = {1: 256, 2: 256, 4: 128, 8:64}[waves_per_simd]
    assert waves_per_simd <= 4
    txt = TEMPLATE.format(grid=grid, block=256 * waves_per_simd, lds=lds, init=init, iters=iters, body=body, nvgpr=nv).replace("v200", "v%d" % (nv - 1))
    full = cl.with_harness_metadata(txt, "mb_kernel", 1)
    p = "_" + "".join(c if c.isalnum() else "_" for c in name) + ".s"
    open(p, "w").write(full)
    r = subprocess.run(["clang", "-x", "assembler", "-target", "amdgcn-amd-amdhsa", "-mcpu=gfx950", p, "-o", p[:-2] + ".co"], capture_output=True, text=True)
    assert r.returncode == 0, r.stderr
    return p[:-2] + ".co"

def run(name, body, init="", waves_per_simd=1, iters=200, lds=100000, grid=256, unroll=8):
    body = "\n".join([body] * unroll)
    co = build(name, body, init, waves_per_simd, iters, lds, grid)
    if not os.path.exists("/dev/kfd"):
        print("built", name); return
    k = cl.AsmKernel(co, "mb_kernel", check=False)
    buf = cl.DeviceBuffer(1 << 20)
    cl._check(cl._hip.hipMemset(ctypes.c_void_p(buf.ptr), 0, 1 << 20))
    ka = struct.pack("<Q", buf.ptr)
    for _ in range(3):
        k.launch((grid, 1, 1), (256 * waves_per_simd, 1, 1), ka, lds)
    cl._check(cl._hip.hipDeviceSynchronize())
    out = buf.to_numpy(np.uint32, (grid, 16, 2))[:, :4 * waves_per_simd].astype(np.int64)
    t0 = out[:, :, 0].min(axis=1);
    span = ((out[:, :, 1] - t0[:, None]) & 0xffffffff).max(axis=1) / iters / waves_per_simd / unroll
    print(f"{name:40s} w/simd={waves_per_simd} cyc/iter/wave: min {span.min():8.2f} med {np.median(span):8.2f} max {span.max():8.2f}")
    k.unload()
```

```python
from mb import run
init = "\n".join(f"    v_mov_b32 v{i}, 0" for i in range(2, 100)) + """
    v_lshrrev_b32 v2, 4, v200
    v_lshlrev_b32 v3, 2, v2
    v_add_u32 v3, 4, v3          ; lane*4+4 : unaligned overlapping
    v_lshlrev_b32 v4, 4, v2      ; lane*16 aligned
    v_lshrrev_b32 v5, 1, v2
    v_lshlrev_b32 v5, 2, v5      ; (lane/2)*4
"""
for w in (1, 2):
    run("b128_al", "\n".join(f"    ds_read_b128 v[{10+4*i}:{13+4*i}], v4 offset:{1024*i}" for i in range(8)) + "\n    s_waitcnt lgkmcnt(0)", init, w)
    run("b128_un", "\n".join(f"    ds_read_b128 v[{10+4*i}:{13+4*i}], v3 offset:{1024*i}" for i in range(8)) + "\n    s_waitcnt lgkmcnt(0)", init, w)
    run("b128_un2", "\n".join(f"    ds_read_b128 v[{10+4*i}:{13+4*i}], v5 offset:{1024*i}" for i in range(8)) + "\n    s_waitcnt lgkmcnt(0)", init, w)
    run("read2x2", "\n".join(f"    ds_read2_b32 v[{10+4*i}:{11+4*i}], v5 offset0:{8*i} offset1:{8*i+1}\n    ds_read2_b32 v[{12+4*i}:{13+4*i}], v5 offset0:{8*i+2} offset1:{8*i+3}" for i in range(8)) + "\n    s_waitcnt lgkmcnt(0)", init, w)
    run("b64x2_un", "\n".join(f"    ds_read_b64 v[{10+4*i}:{11+4*i}], v5 offset:{32*i}\n    ds_read_b64 v[{12+4*i}:{13+4*i}], v5 offset:{32*i+8}" for i in range(8)) + "\n    s_waitcnt lgkmcnt(0)", init, w)
```

```python
from mb import run
def vr(b, n): return f"v[{b}:{b+n-1}]"
init = "\n".join(f"    v_mov_b32 v{i}, 0" for i in range(2, 250)) + """
    v_lshrrev_b32 v1, 4, v200
    v_lshrrev_b32 v41, 5, v1
    v_lshrrev_b32 v44, 2, v1
    v_and_b32 v44, 3, v44
    v_lshl_add_u32 v45, v41, 3, v44
    v_lshlrev_b32 v45, 7, v45
    v_and_b32 v46, 1, v1
    v_lshrrev_b32 v47, 1, v1
    v_and_b32 v47, 1, v47
    v_lshl_add_u32 v46, v46, 1, v47
    v_lshlrev_b32 v46, 3, v46
    v_lshrrev_b32 v47, 4, v1
    v_and_b32 v47, 1, v47
    v_lshl_add_u32 v46, v47, 5, v46
    v_lshrrev_b32 v47, 1, v44
    v_lshlrev_b32 v47, 6, v47
    v_xor_b32 v46, v46, v47
    v_add_u32 v6, v45, v46
    v_lshlrev_b32 v7, 3, v1
"""

def seg(path, drop=()):
    L = open(path).read().split("\n")
    i0 = L.index("K_loop:")
    i1 = min(i for i, l in enumerate(L) if "s_cbranch_scc1 K_loop" in l)
    B = [l for l in L[i0 + 1:i1] if "s_barrier" not in l and "0x1000" not in l and not any(d in l for d in drop)]
    return "\n".join(B)
init += "    v_mov_b32 v7, v6\n    v_mov_b32 v2, v200\n    v_mov_b32 v3, v200\n    v_mov_b32 v4, v200\n    v_mov_b32 v5, v200\n    s_mov_b32 s43, 0\n    s_mov_b32 s45, 0xffff0000\n"
f = "_st.s"
run("loop 4 steps", seg(f), init, 1, iters=50, unroll=1)
run("loop 4 steps nomfma", seg(f, ("v_mfma",)), init, 1, iters=50, unroll=1)
run("loop 4 steps nods", seg(f, ("ds_read",)), init, 1, iters=50, unroll=1)
run("loop 4 steps novalu", seg(f, ("v_lshl", "v_and", "v_sub", "v_cvt")), init, 1, iters=50, unroll=1)
run("loop 4 steps nocvt", seg(f, ("v_cvt",)), init, 1, iters=50, unroll=1)
run("loop 4 steps nob128", seg(f, ("b128",)), init, 1, iters=50, unroll=1)
```

```python
from mb import run
def vr(b, n): return f"v[{b}:{b+n-1}]"
init = "\n".join(f"    v_mov_b32 v{i}, 0" for i in range(2, 250)) + """
    v_lshrrev_b32 v1, 4, v200
    v_lshrrev_b32 v41, 5, v1
    v_lshrrev_b32 v44, 2, v1
    v_and_b32 v44, 3, v44
    v_lshl_add_u32 v45, v41, 3, v44
    v_lshlrev_b32 v45, 7, v45
    v_and_b32 v46, 1, v1
    v_lshrrev_b32 v47, 1, v1
    v_and_b32 v47, 1, v47
    v_lshl_add_u32 v46, v46, 1, v47
    v_lshlrev_b32 v46, 3, v46
    v_lshrrev_b32 v47, 4, v1
    v_and_b32 v47, 1, v47
    v_lshl_add_u32 v46, v47, 5, v46
    v_lshrrev_b32 v47, 1, v44
    v_lshlrev_b32 v47, 6, v47
    v_xor_b32 v46, v46, v47
    v_add_u32 v6, v45, v46
    v_lshlrev_b32 v7, 3, v1
"""

def seg(path, drop=()):
    L = open(path).read().split("\n")
    i0 = L.index("K_loop:")
    i1 = min(i for i, l in enumerate(L) if "s_cbranch_scc1 K_loop" in l)
    B = [l for l in L[i0 + 1:i1] if "s_cbranch" not in l and "0x1000" not in l and not l.startswith("K_") and not any(d in l for d in drop)]
    return "\n".join(B)
init += "    v_mov_b32 v9, v6\n    v_mov_b32 v8, v6\n    v_mov_b32 v10, 0x18000\n    v_mov_b32 v11, 0x18010\n    v_mov_b32 v2, v200\n    v_mov_b32 v3, v200\n    v_mov_b32 v4, v200\n    v_mov_b32 v5, v200\n    s_mov_b32 s43, 0\n    s_mov_b32 s40, 0\n"
f = "_st.s"
run("loop 4 steps", seg(f), init, 1, iters=50, unroll=1)
run("loop 4 steps no16", seg(f, ("16x16x32",)), init, 1, iters=50, unroll=1)
run("loop 4 steps nods", seg(f, ("ds_",)), init, 1, iters=50, unroll=1)
run("loop 4 steps mfma only", seg(f, ("ds_", "s_", "v_read", "v_add", "v_xor")), init, 1, iters=50, unroll=1)
```

```python
from mb import run
def vr(b, n): return f"v[{b}:{b+n-1}]"
init = "\n".join(f"    v_mov_b32 v{i}, 0" for i in range(2, 250)) + """
    v_lshrrev_b32 v1, 4, v200
    v_lshrrev_b32 v41, 5, v1
    v_lshrrev_b32 v44, 2, v1
    v_and_b32 v44, 3, v44
    v_lshl_add_u32 v45, v41, 3, v44
    v_lshlrev_b32 v45, 7, v45
    v_and_b32 v46, 1, v1
    v_lshrrev_b32 v47, 1, v1
    v_and_b32 v47, 1, v47
    v_lshl_add_u32 v46, v46, 1, v47
    v_lshlrev_b32 v46, 3, v46
    v_lshrrev_b32 v47, 4, v1
    v_and_b32 v47, 1, v47
    v_lshl_add_u32 v46, v47, 5, v46
    v_lshrrev_b32 v47, 1, v44
    v_lshlrev_b32 v47, 6, v47
    v_xor_b32 v46, v46, v47
    v_add_u32 v6, v45, v46
    v_lshlrev_b32 v7, 3, v1
"""

def seg(path, drop=()):
    L = open(path).read().split("\n")
    i0 = L.index("J_loop:")
    i1 = min(i for i, l in enumerate(L) if "s_cbranch_scc1 J_loop" in l)
    B = [l for l in L[i0 + 1:i1] if "s_cbranch" not in l and "0x1000" not in l and not l.startswith("J_") and not any(d in l for d in drop)]
    return "\n".join(B)
init += "    v_mov_b32 v9, v6\n    v_mov_b32 v8, v6\n    v_mov_b32 v10, v6\n    v_mov_b32 v11, 0x18000\n    v_mov_b32 v12, 0x18010\n    v_mov_b32 v2, v200\n    v_mov_b32 v3, v200\n    v_mov_b32 v4, v200\n    v_mov_b32 v5, v200\n    s_mov_b32 s43, 0\n    s_mov_b32 s40, 0\n"
f = "_st.s"
run("loop 4 steps", seg(f), init, 1, iters=50, unroll=1)
run("loop 4 steps no16", seg(f, ("16x16x32",)), init, 1, iters=50, unroll=1)
run("loop 4 steps nods", seg(f, ("ds_",)), init, 1, iters=50, unroll=1)
run("loop 4 steps mfma only", seg(f, ("ds_", "s_", "v_read", "v_add", "v_xor")), init, 1, iters=50, unroll=1)
```

```python
import sys, os, subprocess, struct, ctypes
sys.path.insert(0, "cdna_kernels")
import numpy as np
import cdna_launch as cl

TEMPLATE = """; @launch grid=({grid},1,1) block=({block},1,1) lds={lds}
.amdgcn_target "amdgcn-amd-amdhsa--gfx950"
.text
.globl mb_kernel
.p2align 8
.type mb_kernel,@function
mb_kernel:
    s_load_dwordx2 s[4:5], s[0:1], 0
    s_waitcnt lgkmcnt(0)
    s_mov_b32 s8, s4
    s_mov_b32 s9, s5
    s_mov_b32 s10, 0x100000
    s_mov_b32 s11, 0x00020000
    v_lshrrev_b32 v1, 6, v0
    s_nop 1
    v_readfirstlane_b32 s20, v1
    v_and_b32 v200, 63, v0
    v_lshlrev_b32 v200, 4, v200
{init}
    s_mov_b32 s12, {iters}
    s_barrier
    s_memtime s[14:15]
    s_memrealtime s[24:25]
    s_waitcnt lgkmcnt(0)
.p2align 6
L_loop:
{body}
    s_sub_u32 s12, s12, 1
    s_cmp_lg_u32 s12, 0
    s_cbranch_scc1 L_loop
    s_memtime s[16:17]
    s_memrealtime s[26:27]
    s_waitcnt lgkmcnt(0)
    s_sub_u32 s26, s26, s24
    s_lshl_b32 s21, s2, 4
    s_add_u32 s21, s21, s20
    s_lshl_b32 s21, s21, 4
    v_mov_b32 v1, s21
    v_mov_b32 v2, s14
    v_mov_b32 v3, s16
    v_mov_b32 v4, s26
    v_mov_b32 v5, s26
    v_cmp_eq_u32 vcc, 0, v200
    s_and_saveexec_b64 s[22:23], vcc
    buffer_store_dwordx4 v[2:5], v1, s[8:11], 0 offen
    s_waitcnt vmcnt(0)
    s_endpgm
.section .rodata,"a"
.p2align 6
.amdhsa_kernel mb_kernel
  .amdhsa_next_free_vgpr {nvgpr}
  .amdhsa_next_free_sgpr 102
  .amdhsa_accum_offset {nvgpr}
  .amdhsa_group_segment_fixed_size 0
  .amdhsa_kernarg_size 8
  .amdhsa_user_sgpr_count 2
  .amdhsa_user_sgpr_kernarg_segment_ptr 1
  .amdhsa_system_sgpr_workgroup_id_x 1
.end_amdhsa_kernel
"""

def build(name, body, init="", waves_per_simd=1, iters=1000, lds=0, grid=256):
    nv = {1: 256, 2: 256, 4: 128, 8:64}[waves_per_simd]
    assert waves_per_simd <= 4
    txt = TEMPLATE.format(grid=grid, block=256 * waves_per_simd, lds=lds, init=init, iters=iters, body=body, nvgpr=nv).replace("v200", "v%d" % (nv - 1))
    full = cl.with_harness_metadata(txt, "mb_kernel", 1)
    p = "_" + "".join(c if c.isalnum() else "_" for c in name) + ".s"
    open(p, "w").write(full)
    r = subprocess.run(["clang", "-x", "assembler", "-target", "amdgcn-amd-amdhsa", "-mcpu=gfx950", p, "-o", p[:-2] + ".co"], capture_output=True, text=True)
    assert r.returncode == 0, r.stderr
    return p[:-2] + ".co"

def run(name, body, init="", waves_per_simd=1, iters=200, lds=100000, grid=256, unroll=8):
    body = "\n".join([body] * unroll)
    co = build(name, body, init, waves_per_simd, iters, lds, grid)
    if not os.path.exists("/dev/kfd"):
        print("built", name); return
    k = cl.AsmKernel(co, "mb_kernel", check=False)
    buf = cl.DeviceBuffer(1 << 20)
    cl._check(cl._hip.hipMemset(ctypes.c_void_p(buf.ptr), 0, 1 << 20))
    ka = struct.pack("<Q", buf.ptr)
    for _ in range(3):
        k.launch((grid, 1, 1), (256 * waves_per_simd, 1, 1), ka, lds)
    cl._check(cl._hip.hipDeviceSynchronize())
    out = buf.to_numpy(np.uint32, (grid, 16, 4))[:, :4 * waves_per_simd].astype(np.int64)
    t0 = out[:, :, 0].min(axis=1);
    span = ((out[:, :, 1] - t0[:, None]) & 0xffffffff).max(axis=1) / iters / waves_per_simd / unroll
    print(f"{name:40s} w/simd={waves_per_simd} cyc/iter/wave: min {span.min():8.2f} med {np.median(span):8.2f} max {span.max():8.2f}  clock GHz {np.median(((out[:,:,1]-out[:,:,0])&0xffffffff)/(out[:,:,2]*10.0)):.3f}")
    k.unload()
```

```python
from mbc import run
def vr(b, n): return f"v[{b}:{b+n-1}]"
init = "\n".join(f"    v_mov_b32 v{i}, 0" for i in range(2, 126)) + """
    v_mov_b32 v96, 0xdddddddd
    v_mov_b32 v97, v200
    v_mov_b32 v98, v200
    s_mov_b32 s32, 0xffff
    s_mov_b32 s33, 0xffff
"""
QF, C, S0, O, KF, VF, IDX, AK, AV = 4, 8, 24, 56, 72, 80, 96, 97, 98
def body1(toggle=True, nop=True, order=0):
    L = []
    a = lambda s: L.append("    " + s)
    for j in range(2):
        E = lambda r: a(f"v_exp_f32 v{S0+16*(j&1)+r}, v{S0+16*(j&1)+r}")
        def RV():
            if toggle: a("s_mov_b64 exec, s[32:33]")
            a(f"ds_read_b128 {vr(VF+8*((j+1)&1),4)}, v{AV} offset:{2048*j}")
            a(f"ds_read_b128 {vr(VF+8*((j+1)&1)+4,4)}, v{AV} offset:{2048*j+512}")
            if toggle: a("s_mov_b64 exec, -1")
        RK = lambda: a(f"ds_read_b128 {vr(KF+4*(j&1),4)}, v{AK} offset:{2048*j+4096}")
        PV1 = lambda: a(f"v_smfmac_f32_32x32x32_bf16 {vr(O,16)}, {vr(VF+8*((j-1)&1)+4,4)}, {vr(S0+16*((j-1)&1)+8,8)}, v{IDX}")
        PV0 = lambda: a(f"v_smfmac_f32_32x32x32_bf16 {vr(O,16)}, {vr(VF+8*(j&1),4)}, {vr(S0+16*(j&1),8)}, v{IDX}")
        QK = lambda: a(f"v_mfma_f32_32x32x16_bf16 {vr(S0+16*((j+1)&1),16)}, {vr(KF+4*((j+1)&1),4)}, {vr(QF,4)}, {vr(C,16)}")
        if order == 0:
            E(0); E(1); PV1(); RV(); RK()
            for r in range(2, 6): E(r)
            a("s_waitcnt lgkmcnt(3)"); QK()
            for r in range(6, 10): E(r)
            PV0()
            if nop: a("s_nop 0")
            for r in range(10, 16): E(r)
        elif order == 1:
            E(0); E(1); PV1(); E(2)
            a(f"ds_read_b128 {vr(VF+8*((j+1)&1),4)}, v{AV} offset:{2048*j}")
            E(3)
            a(f"ds_read_b128 {vr(VF+8*((j+1)&1)+4,4)}, v{AV} offset:{2048*j+512}")
            E(4); a("s_waitcnt lgkmcnt(2)"); E(5); QK(); E(6); RK()
            for r in range(7, 10): E(r)
            PV0()
            for r in range(10, 16): E(r)
    return "\n".join(L)
def body2(toggle=True):
    L = []
    a = lambda s: L.append("    " + s)
    Q2, C2, S2, O2 = 100, 104, 120, 152
    for j in range(2):
        for (q, c, s0, o, first) in ((QF, C, S0, O, True), (Q2, C2, S2, O2, False)):
            E = lambda r: a(f"v_exp_f32 v{s0+16*(j&1)+r}, v{s0+16*(j&1)+r}")
            PV1 = lambda: a(f"v_smfmac_f32_32x32x32_bf16 {vr(o,16)}, {vr(VF+8*((j-1)&1)+4,4)}, {vr(s0+16*((j-1)&1)+8,8)}, v{IDX}")
            PV0 = lambda: a(f"v_smfmac_f32_32x32x32_bf16 {vr(o,16)}, {vr(VF+8*(j&1),4)}, {vr(s0+16*(j&1),8)}, v{IDX}")
            QK = lambda: a(f"v_mfma_f32_32x32x16_bf16 {vr(s0+16*((j+1)&1),16)}, {vr(KF+4*((j+1)&1),4)}, {vr(q,4)}, {vr(c,16)}")
            E(0); E(1); PV1()
            if not first:
                if toggle: a("s_mov_b64 exec, s[32:33]")
                a(f"ds_read_b128 {vr(VF+8*((j+1)&1),4)}, v{AV} offset:{2048*j}")
                a(f"ds_read_b128 {vr(VF+8*((j+1)&1)+4,4)}, v{AV} offset:{2048*j+512}")
                if toggle: a("s_mov_b64 exec, -1")
            for r in range(2, 6): E(r)
            if first: a("s_waitcnt lgkmcnt(0)")
            QK()
            for r in range(6, 10): E(r)
            if not first: a(f"ds_read_b128 {vr(KF+4*((j+1)&1),4)}, v{AK} offset:{2048*j+4096}")
            PV0()
            for r in range(10, 16): E(r)
    return "\n".join(L)
init2 = init + "\n".join(f"    v_mov_b32 v{i}, 0" for i in range(100, 200))

rinit = init + "    v_mov_b32 v2, v0\n    s_mov_b32 s40, 0x9E3779B1\n    s_mov_b32 s42, 0x3c003c00\n"
def rnd(i): return f"    v_mul_lo_u32 v2, v2, s40\n    v_add_u32 v2, {i*7919+13}, v2\n    v_lshrrev_b32 v3, 7, v2\n    v_xor_b32 v3, v3, v2\n    v_and_b32 v3, 0x83ff83ff, v3\n    v_or_b32 v{i}, s42, v3\n"
for i in list(range(4, 8)) + list(range(100, 108)): rinit += rnd(i)
rinit += "".join(f"    v_mov_b32 v{i}, -4.0\n" for i in range(8, 24))
rinit += "".join(f"    ds_write_b128 v97, v[100:103] offset:{1024*i}\n    ds_write_b128 v97, v[104:107] offset:{1024*i+512}\n" for i in range(9)) + "    s_waitcnt lgkmcnt(0)\n"
b = body1()
for it in (30, 400):
    run(f"cur zero it={it}", b, init, 2, unroll=4, iters=it)
    run(f"cur rand it={it}", b, rinit, 2, unroll=4, iters=it)
    run(f"noexp rand it={it}", "\n".join(l for l in b.split("\n") if "v_exp" not in l), rinit, 2, unroll=4, iters=it)
    run(f"nosmf rand it={it}", "\n".join(l for l in b.split("\n") if "smfmac" not in l), rinit, 2, unroll=4, iters=it)
    run(f"exponly rand it={it}", "\n".join(l for l in b.split("\n") if "mfma" not in l), rinit, 2, unroll=4, iters=it)
```
